```python
import torch

def _softmax(x, axis=-1):
    return torch.softmax(x, dim=axis)
def _gelu(x):
    return torch.nn.functional.gelu(x, approximate="tanh")
def _silu(x):
    return torch.nn.functional.silu(x)
def _sigmoid(x):
    return torch.sigmoid(x)
def _layernorm(x, axis=-1, eps=1e-5):
    m = x.mean(dim=axis, keepdim=True)
    v = x.var(dim=axis, keepdim=True, unbiased=False)
    return (x - m) / torch.sqrt(v + eps)
def _scatter_add(tgt, idx, src, axis=0):
    return tgt.clone().index_add_(axis, idx, src)
def _segment_sum(src, seg, n):
    out = torch.zeros((n,) + src.shape[1:], dtype=src.dtype)
    return out.index_add_(0, seg, src)
def _pad(x, pw):
    flat = tuple(v for pair in reversed(pw) for v in pair)
    return torch.nn.functional.pad(x, flat)

kernel_name = 'parallel_sum__mha_block_cached__glu_gated_reglu__decode'

def setup_inputs():

    _w = (lambda a: (lambda t: t.to(torch.bfloat16) if t.is_floating_point() else t)(torch.as_tensor(a)))
    def _A_setup():
        B, Sq, D = 1, 1, 512
        H, Sk, Dh = 32, 65536, 128
        return {
            "x": _w((lambda *s: torch.randn(*s, dtype=torch.bfloat16) * 0.05)(B, Sq, D)),
            "k_cache": _w((lambda *s: torch.randn(*s, dtype=torch.bfloat16) * 3.2)(B, H, Sk, Dh)),
            "v_cache": _w((lambda *s: torch.randn(*s, dtype=torch.bfloat16) * 1.6)(B, H, Sk, Dh)),
            "wq": _w((lambda *s: torch.randn(*s, dtype=torch.bfloat16) * 3.2)(D, H * Dh) * (D ** -0.5)),
            "wo": _w((lambda *s: torch.randn(*s, dtype=torch.bfloat16) * 1.6)(H * Dh, D) * ((H * Dh) ** -0.5)),
        }
    _A_in = _A_setup()

    def _B_setup():
        B, S, D, F = 1, 1, 512, 1792
        return {
            "x": _w((lambda *s: torch.randn(*s, dtype=torch.bfloat16) * 0.05)(B, S, D)),
            "W_gate": _w((lambda *s: torch.randn(*s, dtype=torch.bfloat16) * 1.6)(D, F) * (2.0 / D) ** 0.5),
            "W_up": _w((lambda *s: torch.randn(*s, dtype=torch.bfloat16) * 1.6)(D, F) * (2.0 / D) ** 0.5),
            "W_down": _w((lambda *s: torch.randn(*s, dtype=torch.bfloat16) * 1.6)(F, D) * (1.0 / F) ** 0.5),
        }
    _B_in = _B_setup()

    return {
        "A_x": _A_in["x"],
        "A_k_cache": _A_in["k_cache"],
        "A_v_cache": _A_in["v_cache"],
        "A_wq": _A_in["wq"],
        "A_wo": _A_in["wo"],
        "B_x": _B_in["x"],
        "B_W_gate": _B_in["W_gate"],
        "B_W_up": _B_in["W_up"],
        "B_W_down": _B_in["W_down"],
    }

def reference(A_x, A_k_cache, A_v_cache, A_wq, A_wo, B_x, B_W_gate, B_W_up, B_W_down):
    def _A_ref(x, k_cache, v_cache, wq, wo):
        B, Sq, D = x.shape
        H, Dh = 32, 128
        q = (lambda x, *d: x.permute(*d))((x @ wq).reshape(B, Sq, H, Dh), 0, 2, 1, 3)
        scores = torch.einsum("bhqd,bhkd->bhqk", q, k_cache) * (Dh ** -0.5)
        p = _softmax(scores, axis=-1)
        o = torch.einsum("bhqk,bhkd->bhqd", p, v_cache)
        return (lambda x, *d: x.permute(*d))(o, 0, 2, 1, 3).reshape(B, Sq, H * Dh) @ wo

    def _B_ref(x, W_gate, W_up, W_down):
        gate = torch.einsum("bsd,df->bsf", x, W_gate)
        up = torch.einsum("bsd,df->bsf", x, W_up)
        gate = gate * (lambda x, dt: x.to(dt))(gate > 0, gate.dtype)
        h = gate * up
        return torch.einsum("bsf,fd->bsd", h, W_down)

    x = A_x
    xn = _layernorm(x, axis=-1)
    return x + _A_ref(xn, A_k_cache, A_v_cache, A_wq, A_wo) + _B_ref(xn, B_W_gate, B_W_up, B_W_down)
```

```python
import sys
from asmlib import *

KNAME = "parallel_sum__mha_block_cached__glu_gated_reglu__decode_kernel"

HEADER = """; Kernarg layout for this problem (96 bytes, ptrs only, base s[0:1]):
"""

DPP = "row_mask:0xf bank_mask:0xf"

class Em:
    def __init__(self, name):
        self.L = []
        self.vm = []
        self.name = name
    def __call__(self, s):
        self.L.append("    " + s)
    def label(self, l):
        self.L.append(f"{l}:")
    def c(self, s):
        self.L.append("    ; " + s)
    def vmem(self, s, tag=None):
        self(s)
        self.vm.append(tag)
    def vwait(self, tag):
        idx = max(i for i, t in enumerate(self.vm) if t == tag)
        n = len(self.vm) - 1 - idx
        assert n <= 63
        self(f"s_waitcnt vmcnt({n})")
    def text(self):
        return "\n".join(self.L)

def wave_reduce(e, v, t, op):
    for d in ["quad_perm:[1,0,3,2]", "quad_perm:[2,3,0,1]", "row_half_mirror", "row_mirror"]:
        e("s_nop 1")
        e(f"{op}_dpp v{v}, v{v}, v{v} {d} {DPP}")
    rows_reduce(e, v, t, op)

def rows_reduce(e, v, t, op):
    for p in ["v_permlane16_swap_b32", "v_permlane32_swap_b32"]:
        e(f"v_mov_b32 v{t}, v{v}")
        e("s_nop 1")
        e(f"{p} v{v}, v{t}")
        e("s_nop 1")
        e(f"{op} v{v}, v{v}, v{t}")

def rbf(e, d, s):
    e(f"v_cvt_pk_bf16_f32 v{d}, v{s}, v{s}")
    e(f"v_and_b32 v{d}, s56, v{d}")

XN = 0
QPART = 10240
QBF = 12288
HBUF = 13312
OREC = 13568
OML = 15616
LDS_BYTES = 15872
MB1 = 0
MB2A = 256 << 10
MB2B = 320 << 10
STAMPS = 1 << 20
SPIN_MAX = 400000

def layernorm(e, X, F, T):
    for i in range(4):
        e(f"v_lshlrev_b32 v{F+2*i}, 16, v{X+i}")
        e(f"v_and_b32 v{F+2*i+1}, s56, v{X+i}")
    e(f"v_add_f32 v{T}, v{F}, v{F+1}")
    e(f"v_add_f32 v{T+1}, v{F+2}, v{F+3}")
    e(f"v_add_f32 v{T+2}, v{F+4}, v{F+5}")
    e(f"v_add_f32 v{T+3}, v{F+6}, v{F+7}")
    e(f"v_add_f32 v{T}, v{T}, v{T+1}")
    e(f"v_add_f32 v{T+2}, v{T+2}, v{T+3}")
    e(f"v_add_f32 v{T}, v{T}, v{T+2}")
    wave_reduce(e, T, T+1, "v_add_f32")
    e(f"v_mul_f32 v{T}, 0x3b000000, v{T}")
    e(f"v_sub_f32 v{T+1}, v{F}, v{T}")
    e(f"v_mul_f32 v{T+2}, v{T+1}, v{T+1}")
    for i in range(1, 8):
        e(f"v_sub_f32 v{T+1}, v{F+i}, v{T}")
        e(f"v_fmac_f32 v{T+2}, v{T+1}, v{T+1}")
    wave_reduce(e, T+2, T+1, "v_add_f32")
    e(f"v_mul_f32 v{T+2}, 0x3b000000, v{T+2}")
    rbf(e, T, T)
    rbf(e, T+2, T+2)
    e(f"v_add_f32 v{T+2}, 0x3727c5ac, v{T+2}")
    rbf(e, T+2, T+2)
    e(f"v_sqrt_f32 v{T+2}, v{T+2}")
    e("s_nop 0")
    rbf(e, T+2, T+2)
    e(f"v_rcp_f32 v{T+3}, v{T+2}")
    for i in range(8):
        e(f"v_sub_f32 v{F+i}, v{F+i}, v{T}")
        rbf(e, F+i, F+i)
        e(f"v_mul_f32 v{T+1}, v{F+i}, v{T+3}")
        e(f"v_fma_f32 v{T+4}, -v{T+1}, v{T+2}, v{F+i}")
        e(f"v_fma_f32 v{T+1}, v{T+4}, v{T+3}, v{T+1}")
        e(f"v_cvt_pk_bf16_f32 v{F+i}, v{T+1}, v{T+1}")

def sel_mfma(e, A, P, B, D, C=None):
    for r in range(4):
        e(f"v_and_b32 v{A+r}, v{P}, v{4+r}")
    e("s_nop 1")
    c = f"v[{D}:{D+3}]" if C is None else C
    e(f"v_mfma_f32_16x16x32_bf16 v[{D}:{D+3}], v[{A}:{A+3}], v[{B}:{B+3}], {c}")

def fold_halves(e, D, T, U):
    for r in range(4):
        e(f"v_mov_b32_dpp v{T+r}, v{D+r} row_ror:8 {DPP}")
    e("s_nop 1")
    for r in range(4):
        e(f"v_permlane32_swap_b32 v{T+r}, v{U+r}")
    e("s_nop 1")
    for r in range(4):
        e(f"v_add_f32 v{D+r}, v{D+r}, v{U+r}")

def gen(name=KNAME, R=6, stamp=False, wpol="", kvpol="nt", xcdmap=True):
    e = Em(name)
    lb = lambda s: f"L_{s}_{name[:24]}"
    def stampit(idx):
        if stamp:
            e(f"s_memrealtime s[{80+2*idx}:{81+2*idx}]")
    e("s_cmp_ge_u32 s2, 256")
    e(f"s_cbranch_scc1 {lb('end')}")
    e("s_load_dwordx16 s[4:19], s[0:1], 0")
    e("s_load_dwordx8 s[20:27], s[0:1], 64")
    stampit(0)
    e("v_lshrrev_b32 v2, 6, v0")
    e("v_and_b32 v1, 63, v0")
    e("v_readfirstlane_b32 s3, v2")
    if xcdmap:
        e("s_and_b32 s28, s2, 7")
        e("s_lshl_b32 s28, s28, 2")
        e("s_bfe_u32 s29, s2, 0x20003")
        e("s_add_u32 s28, s28, s29")
        e("s_lshr_b32 s29, s2, 5")
    else:
        e("s_lshr_b32 s28, s2, 3")
        e("s_and_b32 s29, s2, 7")
    e("s_mov_b32 s30, 0x3db504f3")
    e("s_mov_b32 s31, 0x3fb8aa3b")
    e("s_mov_b32 s56, 0xffff0000")
    e.c("selection masks: v[4+r] = ((l&7)>>1 == r) ? (l&1 ? hi : lo) : 0")
    e("v_and_b32 v8, 1, v1")
    e("v_lshlrev_b32 v8, 4, v8")
    e("v_mov_b32 v9, 0xffff")
    e("v_lshlrev_b32 v8, v8, v9")
    e("v_bfe_u32 v9, v1, 1, 2")
    for r in range(4):
        e(f"v_cmp_eq_u32 vcc, {r}, v9")
        e("s_nop 1")
        e(f"v_cndmask_b32 v{4+r}, 0, v8, vcc")
    e("v_lshlrev_b32 v3, 4, v1")
    e("s_cmp_eq_u32 s3, 4")
    e(f"s_cbranch_scc1 {lb('aux')}")

    RING = 64
    e.c("K lane offset: row pi(i)=4*(i&3)+(i>>2), 16B chunk g")
    e("v_and_b32 v8, 3, v1")
    e("v_lshlrev_b32 v2, 10, v8")
    e("v_bfe_u32 v8, v1, 2, 2")
    e("v_lshl_add_u32 v2, v8, 8, v2")
    e("v_lshrrev_b32 v9, 4, v1")
    e("v_lshl_add_u32 v2, v9, 4, v2")
    e.c("wq lane offset: (128w+32g)*8192 + n*16")
    e("v_and_b32 v8, 15, v1")
    e("v_lshlrev_b32 v22, 4, v8")
    e("v_lshl_add_u32 v22, v9, 18, v22")
    e("s_lshl_b32 s57, s3, 20")
    e("s_lshl_b32 s58, s28, 24")
    e("s_lshl_b32 s59, s29, 21")
    e("s_add_u32 s58, s58, s59")
    e("s_lshl_b32 s59, s28, 8")
    e("s_waitcnt lgkmcnt(0)")
    e.vmem("global_load_dwordx4 v[28:31], v3, s[4:5]", "x")
    e("s_add_u32 s40, s10, s59")
    e("s_addc_u32 s41, s11, 0")
    e("s_sub_u32 s42, 0x400000, s59")
    e("s_mov_b32 s43, 0x20000")
    e("s_add_u32 s32, s6, s58")
    e("s_addc_u32 s33, s7, 0")
    e("s_mov_b32 s34, 0x200000")
    e("s_mov_b32 s35, 0x20000")
    e("s_add_u32 s36, s8, s58")
    e("s_addc_u32 s37, s9, 0")
    e("s_mov_b32 s38, 0x200000")
    e("s_mov_b32 s39, 0x20000")
    e("s_lshl_b32 s72, s3, 12")
    def kload(j):
        for st in range(4):
            r = RING + 32*j + 4*st
            e.vmem(f"buffer_load_dwordx4 v[{r}:{r+3}], v2, s[32:35], s{64+j} offen offset:{64*st} {kvpol}", f"K{j}")
    def vload(j):
        for st in range(4):
            r = RING + 32*j + 16 + 4*st
            e.vmem(f"buffer_load_dwordx4 v[{r}:{r+3}], v3, s[36:39], s{64+j} offen offset:{1024*st} {kvpol}", f"V{j}")
    def nexttile(j):
        e(f"s_mov_b32 s{64+j}, s72")
        e("s_add_u32 s72, s72, 16384")
    assert R == 6
    WQ = RING + 64
    def wqload(t):
        e.vmem(f"buffer_load_dwordx4 v[{WQ+4*t}:{WQ+4*t+3}], v22, s[40:43], s57 offen {wpol}", f"wq{t}")
        e("s_add_u32 s57, s57, 8192")
    nexttile(0); nexttile(1)
    for t in range(0, 4): wqload(t)
    kload(0)
    for t in range(4, 8): wqload(t)
    vload(0)
    for t in range(8, 12): wqload(t)
    kload(1)
    for t in range(12, 16): wqload(t)
    vload(1)
    for t in range(16, 32): wqload(t)
    e.vwait("x")
    layernorm(e, 28, 32, 16)
    e(f"s_mul_i32 s57, s3, 2048")
    e("v_lshlrev_b32 v8, 5, v1")
    e("v_add_u32 v8, s57, v8")
    e(f"ds_write_b128 v8, v[32:35] offset:{XN}")
    e(f"ds_write_b128 v8, v[36:39] offset:{XN+16}")
    e.c("read xn[128w+32g+t] t=0..31")
    e("s_mul_i32 s57, s3, 2560")
    e("v_lshlrev_b32 v8, 7, v9")
    e("v_add_u32 v8, s57, v8")
    e("s_waitcnt lgkmcnt(0)")
    for k in range(8):
        e(f"ds_read_b128 v[{28+4*k}:{31+4*k}], v8 offset:{XN+16*k}")
    e("s_waitcnt lgkmcnt(0)")
    for t in range(32):
        e.vwait(f"wq{t}")
        sel_mfma(e, 12 if t % 2 == 0 else 24, 28 + t, WQ + 4*t, 8, "0" if t == 0 else None)
        if t % 8 == 7:
            j = 2 + t // 8
            nexttile(j); kload(j); vload(j)
    stampit(1)
    e.c("q partial -> LDS")
    e("v_and_b32 v12, 15, v1")
    e("v_lshlrev_b32 v12, 5, v12")
    e("v_and_b32 v13, 16, v1")
    e("v_add_u32 v23, v12, v13")
    e("s_lshl_b32 s57, s3, 9")
    e("v_add_u32 v23, s57, v23")
    e("s_nop 7")
    e(f"ds_write_b128 v23, v[8:11] offset:{QPART}")
    e("s_waitcnt lgkmcnt(0)")
    e("s_barrier")
    e("v_lshlrev_b32 v12, 3, v1")
    for w in range(4):
        e(f"ds_read_b64 v[{28+2*w}:{29+2*w}], v12 offset:{QPART+512*w}")
    e("s_lshl_b32 s57, s3, 8")
    e("v_lshlrev_b32 v13, 2, v1")
    e("v_add_u32 v13, s57, v13")
    e("v_lshrrev_b32 v14, 4, v1")
    e("v_lshlrev_b32 v14, 4, v14")
    e("v_add_u32 v14, s57, v14")
    e("s_waitcnt lgkmcnt(0)")
    e("v_add_f32 v28, v28, v30")
    e("v_add_f32 v29, v29, v31")
    e("v_add_f32 v32, v32, v34")
    e("v_add_f32 v33, v33, v35")
    e("v_add_f32 v28, v28, v32")
    e("v_add_f32 v29, v29, v33")
    e("v_cvt_pk_bf16_f32 v28, v28, v29")
    e(f"ds_write_b32 v13, v28 offset:{QBF}")
    e("s_waitcnt lgkmcnt(0)")
    for st in range(4):
        e(f"ds_read_b128 v[{44+4*st}:{47+4*st}], v14 offset:{QBF+64*st}")
    for r in range(4):
        e(f"v_mov_b32 v{8+r}, 0")
    e("v_mov_b32 v19, 0xff800000")
    e("v_mov_b32 v20, 0")
    e("v_mov_b32 v21, 0")
    e("s_waitcnt lgkmcnt(0)")
    stampit(2)
    NW = 8*R - 4
    e.label(lb("loop"))
    for j in range(R):
        KR = RING + 32*j
        VR = KR + 16
        e(f"s_cmp_ge_u32 s{64+j}, 0x200000")
        e(f"s_cbranch_scc1 {lb('done')}")
        e(f"s_waitcnt vmcnt({NW})")
        for st in range(4):
            c = "0" if st == 0 else "v[12:15]"
            e(f"v_mfma_f32_16x16x32_bf16 v[12:15], v[{KR+4*st}:{KR+4*st+3}], v[{44+4*st}:{47+4*st}], {c}")
        nexttile(j)
        kload(j)
        e("s_nop 1")
        e("v_cvt_pk_bf16_f32 v16, v12, v13")
        e("v_cvt_pk_bf16_f32 v17, v14, v15")
        e("v_lshlrev_b32 v12, 16, v16")
        e("v_and_b32 v13, s56, v16")
        e("v_lshlrev_b32 v14, 16, v17")
        e("v_and_b32 v15, s56, v17")
        for r in range(4):
            e(f"v_mul_f32 v{12+r}, s30, v{12+r}")
        e("v_cvt_pk_bf16_f32 v16, v12, v13")
        e("v_cvt_pk_bf16_f32 v17, v14, v15")
        e("v_lshlrev_b32 v12, 16, v16")
        e("v_and_b32 v13, s56, v16")
        e("v_lshlrev_b32 v14, 16, v17")
        e("v_and_b32 v15, s56, v17")
        e("v_max3_f32 v18, v12, v13, v14")
        e("v_max_f32 v18, v18, v15")
        e("v_cmp_gt_f32 vcc, v18, v19")
        e(f"s_cbranch_vccnz {lb('rare%d' % j)}")
        e.label(lb("back%d" % j))
        for r in range(4):
            e(f"v_fma_f32 v{12+r}, v{12+r}, s31, v20")
        for r in range(4):
            e(f"v_exp_f32 v{12+r}, v{12+r}")
        e("s_nop 0")
        for r in range(4):
            e(f"v_cvt_pk_bf16_f32 v{24+r}, v{12+r}, v{12+r}")
        e("v_add_f32 v12, v12, v13")
        e("v_add_f32 v14, v14, v15")
        for r in range(4):
            for k in range(4):
                e(f"v_and_b32 v{28+4*r+k}, v{24+r}, v{4+k}")
        e("v_add_f32 v12, v12, v14")
        e("v_add_f32 v21, v21, v12")
        e(f"s_waitcnt vmcnt({NW})")
        for r in range(4):
            e(f"v_mfma_f32_16x16x32_bf16 v[8:11], v[{28+4*r}:{31+4*r}], v[{VR+4*r}:{VR+4*r+3}], v[8:11]")
        vload(j)
    e(f"s_branch {lb('loop')}")
    for j in range(R):
        e.label(lb("rare%d" % j))
        rows_reduce(e, 18, 16, "v_max_f32")
        e("v_max_f32 v18, v18, v19")
        e("v_sub_f32 v16, v19, v18")
        e("v_mul_f32 v16, s31, v16")
        e("v_exp_f32 v16, v16")
        e("v_mov_b32 v19, v18")
        e("v_mul_f32 v20, s31, v18")
        e("v_sub_f32 v20, 0, v20")
        for r in range(4):
            e(f"v_mul_f32 v{8+r}, v{8+r}, v16")
        e("v_mul_f32 v21, v21, v16")
        e(f"s_branch {lb('back%d' % j)}")
    e.label(lb("done"))
    stampit(3)
    rows_reduce(e, 21, 16, "v_add_f32")
    e("s_lshl_b32 s57, s3, 2")
    e("v_mov_b32 v16, s57")
    e(f"ds_write_b128 v23, v[8:11] offset:{OREC}")
    e(f"ds_write_b32 v16, v19 offset:{OML}")
    e(f"ds_write_b32 v16, v21 offset:{OML+16}")
    e("s_waitcnt lgkmcnt(0)")
    e("s_barrier")
    e.c("final wave: wave 0 of the WG with h == 4*split")
    e("s_lshl_b32 s57, s29, 2")
    e("s_xor_b32 s57, s57, s28")
    e("s_or_b32 s57, s57, s3")
    e("s_cmp_lg_u32 s57, 0")
    e(f"s_cbranch_scc1 {lb('stampend') if stamp else lb('end')}")
    e("s_waitcnt vmcnt(0)")
    e("s_lshl_b32 s57, s29, 13")
    e(f"s_add_u32 s58, s57, {MB2B}")
    e("v_add_u32 v12, s58, v3")
    e(f"s_add_u32 s58, s57, {MB2A}")
    e("v_add_u32 v13, s58, v3")
    e("v_add_u32 v14, 0x1000, v12")
    e("v_add_u32 v15, 0x1000, v13")
    for u in range(8):
        e(f"global_load_dwordx4 v[{64+4*u}:{67+4*u}], v{12 if u < 4 else 14}, s[26:27] offset:{1024*(u%4)} sc1")
    e("s_lshl_b32 s57, s29, 7")
    e("v_and_b32 v16, 15, v1")
    e("v_lshlrev_b32 v16, 3, v16")
    e("v_add_u32 v16, s57, v16")
    e("global_load_dwordx2 v[18:19], v16, s[4:5]")
    e(f"s_mov_b32 s60, {SPIN_MAX}")
    e.label(lb("fpoll"))
    for u in range(8):
        e(f"global_load_dwordx4 v[{96+4*u}:{99+4*u}], v{13 if u < 4 else 15}, s[26:27] offset:{1024*(u%4)} sc1")
    e("s_waitcnt vmcnt(0)")
    e("v_max3_u32 v20, v96, v97, v98")
    for k in range(99, 127, 2):
        e(f"v_max3_u32 v20, v20, v{k}, v{k+1}")
    e("v_max_u32 v20, v20, v127")
    e("v_cmp_eq_u32 vcc, -1, v20")
    e(f"s_cbranch_vccz {lb('fgo')}")
    e("s_sub_u32 s60, s60, 1")
    e("s_cmp_lg_u32 s60, 0")
    e(f"s_cbranch_scc1 {lb('fpoll')}")
    e.label(lb("fgo"))
    for base in (96, 64):
        for st in (4, 8, 16):
            for u0 in range(0, 32, 2*st):
                for r in range(4):
                    e(f"v_add_f32 v{base+u0+r}, v{base+u0+r}, v{base+u0+st+r}")
    for p in ["v_permlane16_swap_b32", "v_permlane32_swap_b32"]:
        for base in (96, 64):
            for r in range(4):
                e(f"v_mov_b32 v{base+4+r}, v{base+r}")
        e("s_nop 1")
        for base in (96, 64):
            for r in range(4):
                e(f"{p} v{base+r}, v{base+4+r}")
        e("s_nop 1")
        for base in (96, 64):
            for r in range(4):
                e(f"v_add_f32 v{base+r}, v{base+r}, v{base+4+r}")
    e("v_lshlrev_b32 v24, 16, v18")
    e("v_and_b32 v25, s56, v18")
    e("v_lshlrev_b32 v26, 16, v19")
    e("v_and_b32 v27, s56, v19")
    for r in range(4):
        rbf(e, 96+r, 96+r)
        rbf(e, 64+r, 64+r)
        e(f"v_add_f32 v{24+r}, v{24+r}, v{96+r}")
        rbf(e, 24+r, 24+r)
        e(f"v_add_f32 v{24+r}, v{24+r}, v{64+r}")
    e("v_cvt_pk_bf16_f32 v24, v24, v25")
    e("v_cvt_pk_bf16_f32 v25, v26, v27")
    e("s_mov_b64 exec, 0xffff")
    e("global_store_dwordx2 v16, v[24:25], s[22:23]")
    e("s_mov_b64 exec, -1")
    e(f"s_branch {lb('stampend') if stamp else lb('end')}")

    e.label(lb("aux"))
    e.vm = []
    e("s_setprio 3")
    e("s_waitcnt lgkmcnt(0)")
    e.vmem("global_load_dwordx4 v[28:31], v3, s[4:5]", "x")
    e("s_mul_i32 s57, s28, 112")
    e("s_add_u32 s40, s16, s57")
    e("s_addc_u32 s41, s17, 0")
    e(f"s_sub_u32 s42, {512*3584}, s57")
    e("s_mov_b32 s43, 0x20000")
    e("s_add_u32 s44, s18, s57")
    e("s_addc_u32 s45, s19, 0")
    e("s_mov_b32 s46, s42")
    e("s_mov_b32 s47, 0x20000")
    e("s_mul_i32 s57, s28, 57344")
    e("s_lshl_b32 s58, s29, 7")
    e("s_add_u32 s57, s57, s58")
    e("s_add_u32 s48, s20, s57")
    e("s_addc_u32 s49, s21, 0")
    e(f"s_sub_u32 s50, {1792*1024}, s57")
    e("s_mov_b32 s51, 0x20000")
    e("s_lshl_b32 s57, s28, 17")
    e("s_add_u32 s57, s57, s58")
    e("s_add_u32 s52, s12, s57")
    e("s_addc_u32 s53, s13, 0")
    e("s_sub_u32 s54, 0x400000, s57")
    e("s_mov_b32 s55, 0x20000")
    e("v_lshrrev_b32 v40, 3, v1")
    e("v_and_b32 v41, 7, v1")
    e("v_lshlrev_b32 v42, 4, v41")
    e.vwait("x")
    layernorm(e, 28, 32, 16)
    e("v_lshlrev_b32 v8, 5, v1")
    e(f"ds_write_b128 v8, v[32:35] offset:{XN+4*2048}")
    e(f"ds_write_b128 v8, v[36:39] offset:{XN+4*2048+16}")
    e("s_waitcnt lgkmcnt(0)")
    e("s_barrier")
    e.c("clear own mailboxes")
    for r in range(4):
        e(f"v_mov_b32 v{8+r}, -1")
    e("s_lshl_b32 s57, s28, 3")
    e("s_add_u32 s57, s57, s29")
    e("s_lshl_b32 s57, s57, 10")
    e("v_add_u32 v43, s57, v3")
    e("s_lshl_b32 s57, s29, 13")
    e("s_lshl_b32 s58, s28, 8")
    e("s_add_u32 s57, s57, s58")
    e("v_lshlrev_b32 v44, 5, v41")
    e("v_and_b32 v45, 16, v1")
    e("v_add3_u32 v44, v44, v45, s57")
    e(f"v_add_u32 v45, {MB2B}, v44")
    e(f"v_add_u32 v44, {MB2A}, v44")
    e("s_mov_b32 exec_lo, -1")
    e("s_mov_b32 exec_hi, 1")
    e.vmem("global_store_dwordx4 v43, v[8:11], s[26:27] sc1")
    e("s_mov_b64 exec, 0x00ff00ff")
    e.vmem("global_store_dwordx4 v44, v[8:11], s[26:27] sc1")
    e("s_mov_b64 exec, -1")
    e.c("FFN gate/up: rows 64e+t")
    e(f"s_mov_b32 s57, {64*3584}")
    e("v_mul_lo_u32 v46, v40, s57")
    e("v_add_u32 v46, v46, v42")
    e("v_lshlrev_b32 v47, 8, v40")
    e("s_mov_b32 s57, 0")
    for b in range(4):
        for t in range(16):
            e.vmem(f"buffer_load_dwordx4 v[{64+8*t}:{67+8*t}], v46, s[40:43], s57 offen {wpol}", f"g{t}")
            e.vmem(f"buffer_load_dwordx4 v[{68+8*t}:{71+8*t}], v46, s[44:47], s57 offen {wpol}", f"u{t}")
            e("s_add_u32 s57, s57, 3584")
        for k in range(4):
            e(f"ds_read_b128 v[{24+4*k}:{27+4*k}], v47 offset:{XN+4*2048+64*b+16*k}")
        e("s_waitcnt lgkmcnt(0)")
        for t in range(16):
            A = 16 if t % 2 == 0 else 20
            e.vwait(f"u{t}")
            first = (b == 0 and t == 0)
            sel_mfma(e, A, 24+t, 64+8*t, 8, "0" if first else None)
            c = "0" if first else "v[12:15]"
            e(f"v_mfma_f32_16x16x32_bf16 v[12:15], v[{A}:{A+3}], v[{68+8*t}:{71+8*t}], {c}")
    e.c("W_down block loads: rows 56h+8t+e ; wo block: rows 128h+16e+t")
    e("v_lshl_add_u32 v46, v40, 10, v42")
    e("s_mov_b32 s57, 0")
    for t in range(7):
        e.vmem(f"buffer_load_dwordx4 v[{64+4*t}:{67+4*t}], v46, s[48:51], s57 offen nt", f"d{t}")
        e("s_add_u32 s57, s57, 8192")
    e("v_lshl_add_u32 v46, v40, 14, v42")
    e("s_mov_b32 s57, 0")
    for t in range(16):
        e.vmem(f"buffer_load_dwordx4 v[{192+4*t}:{195+4*t}], v46, s[52:55], s57 offen offset:{1024*(t%4)} nt", f"o{t}")
        if t % 4 == 3:
            e("s_add_u32 s57, s57, 4096")
    fold_halves(e, 8, 16, 20)
    fold_halves(e, 12, 16, 20)
    for r in range(4):
        rbf(e, 8+r, 8+r)
        rbf(e, 12+r, 12+r)
        e(f"v_cmp_lt_f32 vcc, 0, v{8+r}")
        e("s_nop 1")
        e(f"v_cndmask_b32 v16, 0, 1.0, vcc")
        e(f"v_mul_f32 v{8+r}, v{8+r}, v16")
        e(f"v_mul_f32 v{8+r}, v{8+r}, v{12+r}")
        e(f"v_cvt_pk_bf16_f32 v{8+r}, v{8+r}, v{8+r}")
    e("v_lshlrev_b32 v16, 5, v41")
    e("v_and_b32 v17, 16, v1")
    e("v_add_u32 v16, v16, v17")
    e("s_mov_b64 exec, 0x00ff00ff")
    e(f"ds_write_b128 v16, v[8:11] offset:{HBUF}")
    e("s_mov_b64 exec, -1")
    e("v_lshlrev_b32 v16, 2, v40")
    e("s_waitcnt lgkmcnt(0)")
    for t in range(7):
        e(f"ds_read_b32 v{24+t}, v16 offset:{HBUF+32*t}")
    e("s_waitcnt lgkmcnt(0)")
    for t in range(7):
        e.vwait(f"d{t}")
        sel_mfma(e, 16 if t % 2 == 0 else 20, 24+t, 64+4*t, 8, "0" if t == 0 else None)
    e("s_nop 7")
    fold_halves(e, 8, 16, 20)
    e("s_mov_b64 exec, 0x00ff00ff")
    e.vmem("global_store_dwordx4 v45, v[8:11], s[26:27] sc1")
    e("s_waitcnt vmcnt(0)")
    e("s_mov_b64 exec, 1")
    e("v_mov_b32 v16, 0")
    e("v_mov_b32 v17, 1")
    e("global_atomic_add v16, v17, s[24:25] sc1")
    stampit(1)
    e(f"s_mov_b32 s60, {SPIN_MAX}")
    e.label(lb("cpoll"))
    e("s_sleep 16")
    e("global_load_dword v17, v16, s[24:25] sc1")
    e("s_waitcnt vmcnt(0)")
    e("v_readfirstlane_b32 s57, v17")
    e("s_cmp_ge_u32 s57, 256")
    e(f"s_cbranch_scc1 {lb('cgo')}")
    e("s_sub_u32 s60, s60, 1")
    e("s_cmp_lg_u32 s60, 0")
    e(f"s_cbranch_scc1 {lb('cpoll')}")
    e.label(lb("cgo"))
    e("s_mov_b64 exec, -1")
    stampit(2)
    e.c("addresses for the hand-off")
    e("v_and_b32 v48, 31, v1")
    e("v_lshlrev_b32 v48, 4, v48")
    e("v_mov_b32 v49, 0")
    e("s_lshl_b32 s57, s28, 13")
    e("v_lshlrev_b32 v50, 10, v41")
    e("v_add_u32 v50, s57, v50")
    e("v_lshl_add_u32 v51, v40, 6, v50")
    e("v_cmp_eq_u32 s[74:75], 32, v1")
    e("s_barrier")
    for w in range(4):
        e(f"ds_read_b128 v[{64+4*w}:{67+4*w}], v48 offset:{OREC+512*w}")
    e(f"ds_read_b128 v[80:83], v49 offset:{OML}")
    e(f"ds_read_b128 v[84:87], v49 offset:{OML+16}")
    e("s_waitcnt lgkmcnt(0)")
    stampit(3)
    e("v_max3_f32 v16, v80, v81, v82")
    e("v_max_f32 v16, v16, v83")
    for w in range(4):
        e(f"v_sub_f32 v{80+w}, v{80+w}, v16")
    for w in range(4):
        e(f"v_mul_f32 v{80+w}, s31, v{80+w}")
    for w in range(4):
        e(f"v_exp_f32 v{80+w}, v{80+w}")
    e("s_nop 0")
    for r in range(4):
        e(f"v_mul_f32 v{8+r}, v{64+r}, v80")
    e("v_mul_f32 v17, v84, v80")
    for w in range(1, 4):
        for r in range(4):
            e(f"v_fmac_f32 v{8+r}, v{64+4*w+r}, v{80+w}")
        e(f"v_fmac_f32 v17, v{84+w}, v{80+w}")
    e("v_cndmask_b32 v8, v8, v16, s[74:75]")
    e("v_cndmask_b32 v9, v9, v17, s[74:75]")
    for r in range(4):
        e(f"v_min_u32 v{8+r}, -2, v{8+r}")
    e("s_mov_b32 exec_lo, -1")
    e("s_mov_b32 exec_hi, 1")
    e("global_store_dwordx4 v43, v[8:11], s[26:27] sc1")
    e("s_mov_b64 exec, -1")
    e(f"s_mov_b32 s60, {SPIN_MAX}")
    e.label(lb("gpoll"))
    for k in range(4):
        e(f"global_load_dwordx4 v[{64+4*k}:{67+4*k}], v51, s[26:27] offset:{16*k} sc1")
    e("global_load_dwordx2 v[80:81], v50, s[26:27] offset:512 sc1")
    e("s_waitcnt vmcnt(0)")
    e("v_max3_u32 v16, v64, v65, v66")
    for k in range(67, 81, 2):
        e(f"v_max3_u32 v16, v16, v{k}, v{k+1}")
    e("v_max_u32 v16, v16, v81")
    e("v_cmp_eq_u32 vcc, -1, v16")
    e(f"s_cbranch_vccz {lb('ggo')}")
    e("s_sub_u32 s60, s60, 1")
    e("s_cmp_lg_u32 s60, 0")
    e(f"s_cbranch_scc1 {lb('gpoll')}")
    e.label(lb("ggo"))
    stampit(4)
    D8 = ["quad_perm:[1,0,3,2]", "quad_perm:[2,3,0,1]", "row_half_mirror"]
    e("v_mov_b32 v16, v80")
    for d in D8:
        e("s_nop 1")
        e(f"v_max_f32_dpp v16, v16, v16 {d} {DPP}")
    e("v_sub_f32 v16, v80, v16")
    e("v_mul_f32 v16, s31, v16")
    e("v_exp_f32 v16, v16")
    e("s_nop 0")
    e("v_mul_f32 v17, v16, v81")
    for d in D8:
        e("s_nop 1")
        e(f"v_add_f32_dpp v17, v17, v17 {d} {DPP}")
    e("v_rcp_f32 v18, v17")
    e("s_nop 0")
    e("v_mul_f32 v19, v16, v18")
    e("v_fma_f32 v20, -v19, v17, v16")
    e("v_fma_f32 v16, v20, v18, v19")
    for t in range(16):
        e(f"v_mul_f32 v{64+t}, v{64+t}, v16")
    for d in D8:
        for t in range(16):
            e(f"v_add_f32_dpp v{64+t}, v{64+t}, v{64+t} {d} {DPP}")
    for t in range(16):
        e(f"v_cvt_pk_bf16_f32 v{64+t}, v{64+t}, v{64+t}")
    for t in range(16):
        A = 96 + 4*t
        for r in range(4):
            e(f"v_and_b32 v{A+r}, v{64+t}, v{4+r}")
        if t >= 1:
            tt = t - 1
            c = "0" if tt == 0 else "v[8:11]"
            e(f"v_mfma_f32_16x16x32_bf16 v[8:11], v[{96+4*tt}:{99+4*tt}], v[{192+4*tt}:{195+4*tt}], {c}")
    e("s_nop 1")
    e(f"v_mfma_f32_16x16x32_bf16 v[8:11], v[156:159], v[252:255], v[8:11]")
    e("s_nop 7")
    fold_halves(e, 8, 16, 20)
    for r in range(4):
        e(f"v_min_u32 v{8+r}, -2, v{8+r}")
    e("s_mov_b64 exec, 0x00ff00ff")
    e("global_store_dwordx4 v44, v[8:11], s[26:27] sc1")
    e("s_mov_b64 exec, -1")
    if stamp:
        e.label(lb("stampend"))
        e("s_waitcnt vmcnt(0)")
        e("s_memrealtime s[90:91]")
        e("s_waitcnt lgkmcnt(0)")
        e("s_mul_i32 s57, s2, 5")
        e("s_add_u32 s57, s57, s3")
        e("s_lshl_b32 s57, s57, 6")
        e(f"s_add_u32 s57, s57, {STAMPS}")
        e("v_mov_b32 v16, s57")
        for k in range(12):
            e(f"v_mov_b32 v{64+k}, s{80+k}")
        e("s_mov_b64 exec, 1")
        for k in range(3):
            e(f"global_store_dwordx4 v16, v[{64+4*k}:{67+4*k}], s[26:27] offset:{16*k}")
    e.label(lb("end"))
    return kernel_text(name, e.text(), 256, 102), f"{name},256,320,{LDS_BYTES}"

def single_file(path, **kw):
    txt, spec = gen(**kw)
    asm = HEADER + f"; @launch grid=(256,1,1) block=(320,1,1) lds={LDS_BYTES}\n" + '.amdgcn_target "amdgcn-amd-amdhsa--gfx950"\n' + txt
    build(path, asm, KNAME)
    return spec

if __name__ == "__main__":
    spec = single_file("k/main.s")
    spec2 = single_file("k/main_stamp.s", stamp=True)
    print("work/k/main.co:" + spec)
```
